```python
import torch

def _softmax(x, axis=-1):
    return torch.softmax(x, dim=axis)
def _gelu(x):
    return torch.nn.functional.gelu(x, approximate="tanh")
def _silu(x):
    return torch.nn.functional.silu(x)
def _sigmoid(x):
    return torch.sigmoid(x)
def _layernorm(x, axis=-1, eps=1e-5):
    m = x.mean(dim=axis, keepdim=True)
    v = x.var(dim=axis, keepdim=True, unbiased=False)
    return (x - m) / torch.sqrt(v + eps)
def _scatter_add(tgt, idx, src, axis=0):
    return tgt.clone().index_add_(axis, idx, src)
def _segment_sum(src, seg, n):
    out = torch.zeros((n,) + src.shape[1:], dtype=src.dtype)
    return out.index_add_(0, seg, src)
def _pad(x, pw):
    flat = tuple(v for pair in reversed(pw) for v in pair)
    return torch.nn.functional.pad(x, flat)

kernel_name = 'interleave_layers__sliding_local_dilated__glu_gated_glu__prompt'

def setup_inputs():

    _w = (lambda a: (lambda t: t.to(torch.bfloat16) if t.is_floating_point() else t)(torch.as_tensor(a)))
    def _A_setup():
        B, S, D = 1, 2048, 640
        return {
            "x": _w((lambda *s: torch.randn(*s, dtype=torch.bfloat16) * 0.05)(B, S, D)),
            "wqkv": _w((lambda *s: torch.randn(*s, dtype=torch.bfloat16) * 0.05)(D, 3 * D)),
            "wo": _w((lambda *s: torch.randn(*s, dtype=torch.bfloat16) * 0.05)(D, D)),
        }
    _A_in = _A_setup()

    def _B_setup():
        B, S, D, F = 1, 2048, 640, 1536
        return {
            "x": _w((lambda *s: torch.randn(*s, dtype=torch.bfloat16) * 0.05)(B, S, D)),
            "w_gate": _w((lambda *s: torch.randn(*s, dtype=torch.bfloat16) * 0.05)(D, F)),
            "w_up": _w((lambda *s: torch.randn(*s, dtype=torch.bfloat16) * 0.05)(D, F)),
            "w_down": _w((lambda *s: torch.randn(*s, dtype=torch.bfloat16) * 0.05)(F, D)),
        }
    _B_in = _B_setup()

    return {
        "A_x": _A_in["x"],
        "A_wqkv": _A_in["wqkv"],
        "A_wo": _A_in["wo"],
        "B_x": _B_in["x"],
        "B_w_gate": _B_in["w_gate"],
        "B_w_up": _B_in["w_up"],
        "B_w_down": _B_in["w_down"],
    }

def reference(A_x, A_wqkv, A_wo, B_x, B_w_gate, B_w_up, B_w_down):
    def _A_ref(x, wqkv, wo):
        B, S, D = x.shape
        H = 32; Dh = D // H
        W, dil = 8, 2
        qkv = (lambda x, *d: x.permute(*d))((x @ wqkv).reshape(B, S, 3, H, Dh), 2, 0, 3, 1, 4)
        q, k, v = qkv[0], qkv[1], qkv[2]
        scale = Dh ** -0.5
        pos = torch.arange(S)
        off = torch.arange(W) * dil
        idx = pos[:, None] - off[None, :]
        mask = idx >= 0
        idx_c = torch.where(mask, idx, 0).reshape(-1)
        kg = k[:, :, idx_c, :].reshape(B, H, S, W, Dh)
        vg = v[:, :, idx_c, :].reshape(B, H, S, W, Dh)
        logits = torch.einsum("bhsd,bhswd->bhsw", q, kg) * scale
        logits = torch.where(mask[None, None, :, :], logits, -1e9)
        attn = _softmax(logits, axis=-1)
        o = torch.einsum("bhsw,bhswd->bhsd", attn, vg)
        return (lambda x, *d: x.permute(*d))(o, 0, 2, 1, 3).reshape(B, S, D) @ wo

    def _B_ref(x, w_gate, w_up, w_down):
        g = torch.einsum("bsd,df->bsf", x, w_gate)
        u = torch.einsum("bsd,df->bsf", x, w_up)
        h = _sigmoid(g) * u
        return torch.einsum("bsf,fd->bsd", h, w_down)

    x = A_x
    x = x + _A_ref(_layernorm(x, axis=-1), A_wqkv, A_wo)
    x = x + _B_ref(_layernorm(x, axis=-1), B_w_gate, B_w_up, B_w_down)
    x = x + _A_ref(_layernorm(x, axis=-1), A_wqkv, A_wo)
    x = x + _B_ref(_layernorm(x, axis=-1), B_w_gate, B_w_up, B_w_down)
    return x
```

```python
import re

TRANS = ("v_exp_f32", "v_log_f32", "v_rcp_f32", "v_rsq_f32", "v_sqrt_f32", "v_sin_f32", "v_cos_f32")


def v(i, n=1):
    return "v%d" % i if n == 1 else "v[%d:%d]" % (i, i + n - 1)


def a(i, n=1):
    return "a%d" % i if n == 1 else "a[%d:%d]" % (i, i + n - 1)


def s(i, n=1):
    return "s%d" % i if n == 1 else "s[%d:%d]" % (i, i + n - 1)


_REG = re.compile(r"^-?\|?(?:abs\()?([vas])(?:(\d+)|\[(\d+):(\d+)\])\)?\|?$")


def regs_of(op):
    op = op.strip()
    if op in ("vcc",):
        return set(), {"vcc"}
    if op in ("exec",):
        return set(), {"exec"}
    if op == "m0":
        return set(), {"m0"}
    m = _REG.match(op)
    if not m:
        return set(), set()
    k = m.group(1)
    lo = int(m.group(2) if m.group(2) is not None else m.group(3))
    hi = int(m.group(2) if m.group(2) is not None else m.group(4))
    r = set(range(lo, hi + 1))
    if k == "v":
        return r, set()
    if k == "a":
        return {x + 256 for x in r}, set()
    return set(), r


class Ins:
    __slots__ = ("text", "op", "kind", "vr", "vw", "sr", "sw", "states", "srcc", "dpp", "wide_store", "trans",
                 "lds_dma", "vdata")

    def __init__(self, text):
        self.text = text
        t = text.split(";")[0].strip()
        parts = t.split(None, 1)
        op = parts[0]
        self.op = op
        rest = parts[1] if len(parts) > 1 else ""
        ops = [x.strip() for x in rest.split(",")] if rest else []
        mods = ""
        if ops:
            last = ops[-1].split(None, 1)
            ops[-1] = last[0]
            mods = last[1] if len(last) > 1 else ""
        self.vr, self.vw, self.sr, self.sw = set(), set(), set(), set()
        self.states = 1
        self.srcc = set()
        self.dpp = "row_" in mods or "quad_perm" in mods or op.endswith("_dpp")
        self.wide_store = False
        self.trans = False
        self.lds_dma = False
        self.vdata = set()

        def rd(o):
            x, y = regs_of(o)
            self.vr |= x
            self.sr |= y

        def wr(o):
            x, y = regs_of(o)
            self.vw |= x
            self.sw |= y

        if op == "s_nop":
            self.kind = "nop"
            self.states = int(ops[0], 0) + 1
        elif op.startswith("v_mfma"):
            self.kind = "mfma"
            wr(ops[0]); rd(ops[1]); rd(ops[2]); rd(ops[3])
            self.srcc = regs_of(ops[3])[0]
        elif op.startswith("v_cmp"):
            self.kind = "valu"
            wr(ops[0])
            for o in ops[1:]:
                rd(o)
        elif op.startswith("v_permlane"):
            self.kind = "valu"
            wr(ops[0]); wr(ops[1]); rd(ops[0]); rd(ops[1])
        elif op.startswith("v_readfirstlane") or op.startswith("v_readlane"):
            self.kind = "valu"
            wr(ops[0])
            for o in ops[1:]:
                rd(o)
        elif op.startswith("v_"):
            self.kind = "valu"
            wr(ops[0])
            start = 1
            if "_co_" in op:
                wr(ops[1]); start = 2
            for o in ops[start:]:
                rd(o)
            if op.startswith("v_fmac") or op.startswith("v_dot2c") or self.dpp or op.startswith("v_writelane"):
                rd(ops[0])
            if op.startswith("v_cndmask") and len(ops) == 3:
                self.sr.add("vcc")
            self.trans = any(op.startswith(x) for x in TRANS)
        elif op.startswith("ds_"):
            self.kind = "ds"
            if op.startswith("ds_read") or op.startswith("ds_bpermute") or op.startswith("ds_swizzle"):
                wr(ops[0])
                for o in ops[1:]:
                    rd(o)
            else:
                for o in ops:
                    rd(o)
                self.vdata = regs_of(ops[1])[0]
                self.wide_store = "b128" in op or "b96" in op
        elif op.startswith("buffer_") or op.startswith("global_"):
            self.kind = "vmem"
            is_lds = " lds" in (" " + mods) or "_lds_" in op
            self.lds_dma = is_lds
            if is_lds:
                for o in ops:
                    rd(o)
                self.sr.add("m0")
            elif "_load" in op:
                wr(ops[0])
                if "d16" in op:
                    rd(ops[0])
                for o in ops[1:]:
                    rd(o)
            else:
                for o in ops:
                    rd(o)
                d = ops[0] if op.startswith("buffer_") else ops[1]
                self.vdata = regs_of(d)[0]
                self.wide_store = "x4" in op or "x3" in op
        elif op.startswith("s_"):
            self.kind = "salu"
            nodst = ("s_cmp", "s_cbranch", "s_branch", "s_waitcnt", "s_barrier", "s_endpgm", "s_setprio", "s_sleep",
                     "s_bitcmp", "s_setpc")
            if any(op.startswith(x) for x in nodst):
                for o in ops:
                    rd(o)
                if "vcc" in op:
                    self.sr.add("vcc")
            else:
                if ops:
                    wr(ops[0])
                for o in ops[1:]:
                    rd(o)
                if "saveexec" in op:
                    self.sw.add("exec")
        else:
            self.kind = "other"


class Asm:
    def __init__(self):
        self.lines = []
        self.hist = []
        self.vm = []
        self.vm_done = 0
        self.lg = []
        self.lg_done = 0
        self.t = 0
        self.mfma_free = 0
        self.n_ins = 0
        self.n_nop = 0
        self.pump_hook = None
        self.in_pump = False
        self.no_pump = 0

    def raw(self, text):
        self.lines.append(text)

    def label(self, name):
        self.lines.append(name + ":")

    def comment(self, text):
        self.lines.append("; " + text)

    def _need(self, ins):
        need = 0
        dist = 0
        for p in reversed(self.hist[-24:]):
            req = 0
            touch_v = ins.vr | ins.vw
            if p.kind == "valu":
                if ins.kind == "mfma" and p.vw & ins.vr:
                    req = max(req, 2)
                if ins.kind == "valu":
                    if p.trans and not ins.trans and p.vw & touch_v:
                        req = max(req, 1)
                    if (ins.dpp or ins.op.startswith("v_permlane")) and p.vw & ins.vr:
                        req = max(req, 2)
                    if (ins.op.startswith("v_readfirstlane") or ins.op.startswith("v_readlane")) and p.vw & ins.vr:
                        req = max(req, 1)
                    if p.sw & ins.sr:
                        req = max(req, 4 if "lane" in ins.op else 2)
                if ins.kind in ("vmem", "ds") and p.trans and p.vw & ins.vr:
                    req = max(req, 1)
                if ins.kind == "vmem" and p.sw & ins.sr:
                    req = max(req, 5)
                if ins.kind == "salu" and p.sw & ins.sr:
                    req = max(req, 4)
            if p.kind == "mfma":
                big = "32x32" in p.op
                full = 12 if big else 8
                if ins.kind == "mfma":
                    ab = ins.vr - ins.srcc
                    if p.vw & ab:
                        req = max(req, full)
                    if p.vw & ins.srcc and p.vw != ins.srcc:
                        req = max(req, 10 if big else 6)
                    if p.vw & ins.vw and p.vw != ins.srcc:
                        req = max(req, full)
                elif ins.kind in ("valu", "vmem", "ds"):
                    if p.vw & touch_v:
                        req = max(req, full)
                    if ins.kind == "valu" and p.srcc & ins.vw:
                        req = max(req, 7 if big else 3)
            if p.wide_store and ins.kind in ("valu", "mfma", "ds", "vmem") and p.vdata & ins.vw:
                req = max(req, 2)
            if p.kind == "salu" and "m0" in p.sw and ins.lds_dma:
                req = max(req, 1)
            need = max(need, req - dist)
            dist += p.states
        return need

    def __call__(self, text):
        for line in text.split("\n"):
            line = line.strip()
            if not line:
                continue
            if line.startswith(";"):
                self.lines.append(line)
                continue
            if line.endswith(":"):
                self.lines.append(line)
                continue
            self._emit(line)

    def _emit(self, line):
        ins = Ins(line)
        n = self._need(ins)
        while n > 0:
            k = min(n, 16)
            nop = Ins("s_nop %d" % (k - 1))
            self.lines.append("    s_nop %d" % (k - 1))
            self.hist.append(nop)
            self.t += 4 * k
            self.n_nop += 1
            n -= k
        self.lines.append("    " + line)
        self.hist.append(ins)
        self.n_ins += 1
        if ins.kind == "mfma":
            dur = 32 if "32x32" in ins.op else 16
            self.t = max(self.t, self.mfma_free)
            self.mfma_free = self.t + dur
            self.t += 8
        elif ins.kind == "nop":
            self.t += 4 * ins.states
        elif ins.trans:
            self.t += 8
        else:
            self.t += 4
        if self.pump_hook and not self.in_pump and not self.no_pump:
            self.in_pump = True
            self.pump_hook(ins)
            self.in_pump = False

    def vmem(self, text, tag=None):
        self.vm.append(tag)
        n = len(self.vm) - 1
        self(text)
        return n

    def vm_wait(self, seq):
        if seq is None or seq < self.vm_done:
            return
        n = len(self.vm) - 1 - seq
        n = min(n, 63)
        save, self.no_pump = self.no_pump, 1
        self("s_waitcnt vmcnt(%d)" % n)
        self.no_pump = save
        self.vm_done = max(self.vm_done, len(self.vm) - n)

    def vm_drain(self):
        self.vm_wait(len(self.vm) - 1)

    def ds(self, text):
        self.lg.append(1)
        n = len(self.lg) - 1
        self(text)
        return n

    def ds_wait(self, seq):
        if seq is None or seq < self.lg_done:
            return
        n = min(len(self.lg) - 1 - seq, 15)
        save, self.no_pump = self.no_pump, 1
        self("s_waitcnt lgkmcnt(%d)" % n)
        self.no_pump = save
        self.lg_done = max(self.lg_done, len(self.lg) - n)

    def ds_drain(self):
        self.ds_wait(len(self.lg) - 1)

    def text(self):
        return "\n".join(self.lines) + "\n"
```

```python
import sys, os, collections, contextlib
sys.path.insert(0, os.path.dirname(os.path.abspath(__file__)))
from asmlib import Asm, v, a, s

NAME = "interleave_layers__sliding_local_dilated__glu_gated_glu__prompt"

WQ = 0x0000000
WO = 0x0280000
WG = 0x0348000
WD = 0x0708000
OB = [0x0900000, 0x0B80000]
HB = [0x0E00000, 0x1400000]
X1 = [0x1A00000, 0x1C80000]
X2 = 0x1F00000
ST = [0x2180000 + i * 0x20000 for i in range(4)]
FLAGS = 0x2200000
DBG = 0x2210000
WS_BYTES = 0x2300000
XBYTES = 2048 * 1280
OOB = 0x80000000

NSLOT = 14
RB = 1280
LH = RB + NSLOT * 8192
LQ = LH + 20480
LR = LH
QS = 272
TS = 336
PS = 32 * TS
LDS_BYTES = 163840

SX, SW, SO = 4, 8, 12
sG, sM, sWv, sRP, sC, sR0 = 16, 17, 18, 19, 20, 21
sB1, sB2, sB3, sB4 = 22, 23, 24, 25
sBt, sAt = 26, 27
sDm, sDH = 28, 29
sOA, sHA, sOS, sHS, sXS, sSS, sSL = 30, 31, 32, 33, 34, 35, 36
sFO, sFG, sFP = 37, 38, 39
sQ3, sQ2, sQ12, sI1, sM10 = 40, 42, 44, 46, 48
sXA = [50, 51]
sXH = 52
sSt = 53
sT = 56
sC640, sCeps, sCl2e, sCsc = 64, 65, 66, 67
sSpin = 68
sStamp = 70

vL16 = 1
vA = [2, 3, 4, 5]
vD = [6, 7]
vDH = 8
vQW, vQWH = 9, 10
vQR, vKX1, vKX2, vVY, vVX1, vVX2 = 11, 12, 13, 14, 15, 16
vRW, vRR = 17, 18
vXO, vSO, vSL, vSH = 19, 20, 21, 22
vOT, vHO, vFL, vFS = 23, 24, 25, 26
vPoll = 27
vONE = 28
vMX, vMY, vMX1 = 32, 36, 40
vCS1 = 44
vCS3 = 52
vRES = 64
vSM, vSA, vSS = 80, 84, 88
vSMH, vSAH = 92, 93
vTmp = 94
R_A = 96
R_ACC = 128
R_T = 176
R_RAW = 200
R_P = 216

LOG2E = 1.4426950408889634


def f2u(x):
    import struct
    return struct.unpack("<I", struct.pack("<f", x))[0]


class Cfg:
    stamps = False
    b_interval = 68
    a_interval = 24
    groups = (0, 3, 6)
    pub_s1 = 9
    pub_s3 = 5
    pub_s4 = 7
    poll_s3 = 15


class Main:
    def __init__(self, cfg):
        self.cfg = cfg
        self.A = Asm()
        self.nlab = 0
        self.stampn = 0
        self.stamp_names = []
        self.qA = collections.deque()
        self.qB = collections.deque()
        self.last_issue = -1000
        self.bfree = collections.deque(range(64))
        self.bslot = {}
        self.bseq = {}
        self.bt_val = None
        self.lfree = collections.deque(range(NSLOT))
        self.lslot = {}
        self.lseq = {}
        self.vfree = collections.deque()
        self.aslot = {}
        self.aseq = {}
        self.at_val = None
        self.A.pump_hook = self.pump

    @contextlib.contextmanager
    def atomic(self):
        self.A.no_pump += 1
        try:
            yield
        finally:
            self.A.no_pump -= 1

    def lab(self, p):
        self.nlab += 1
        return "L_%s_%d" % (p, self.nlab)

    def stamp(self, name):
        if not self.cfg.stamps or self.stampn >= 31:
            return
        A = self.A
        with self.atomic():
            A("s_memtime s[%d:%d]" % (sT + 6, sT + 7))
            A("s_waitcnt lgkmcnt(0)")
            A.lg_done = len(A.lg)
            A("s_mov_b32 s%d, s%d" % (sStamp + self.stampn, sT + 6))
        self.stamp_names.append(name)
        self.stampn += 1

    def ready(self, op):
        k = op[0]
        if k == "B":
            return bool(self.bfree)
        if k == "DMA":
            return op[1] in self.lslot or bool(self.lfree)
        if k == "AD":
            return bool(self.vfree)
        return True

    def issue(self, op):
        A = self.A
        k = op[0]
        if k == "B":
            _, key, base, idx = op
            slot = self.bfree.popleft()
            self.bslot[key] = slot
            val = (base, idx // 4)
            if self.bt_val != val:
                A("s_add_u32 s%d, s%d, %d" % (sBt, base, (idx // 4) * 4096))
                self.bt_val = val
            self.bseq[key] = A.vmem("buffer_load_dwordx4 %s, %s, %s, s%d offen offset:%d" % (
                a(4 * slot, 4), v(vL16), s(SW, 4), sBt, (idx % 4) * 1024))
        elif k == "DMA":
            _, key, srd, sx, b, hf = op
            if key not in self.lslot:
                self.lslot[key] = self.lfree.popleft()
            slot = self.lslot[key]
            A("s_add_u32 m0, s%d, %d" % (sDm, RB + slot * 8192 + hf * 1024 - b * 128))
            self.lseq[key] = A.vmem("buffer_load_dwordx4 %s, %s, s%d offen offset:%d sc1 lds" % (
                v(vD[hf]), s(srd, 4), sx, b * 128))
        elif k == "DMAH":
            _, key, srd, kk = op
            A("s_add_u32 m0, s%d, %d" % (sDH, kk * 4096 - kk * 256))
            self.lseq[key] = A.vmem("buffer_load_dwordx4 %s, %s, s%d offen offset:%d sc1 lds" % (
                v(vDH), s(srd, 4), sXH, kk * 256))
        elif k == "AD":
            _, key, base, off = op
            r = self.vfree.popleft()
            self.aslot[key] = r
            val = (base, off // 4096)
            if self.at_val != val:
                A("s_add_u32 s%d, s%d, %d" % (sAt, base, (off // 4096) * 4096))
                self.at_val = val
            self.aseq[key] = A.vmem("buffer_load_dwordx4 %s, %s, %s, s%d offen offset:%d sc1" % (
                v(r, 4), v(vL16), s(SW, 4), sAt, off % 4096))
        elif k == "STAT":
            _, key, dst, vaddr, pre, i = op
            if pre:
                A(pre)
            self.aseq[key] = A.vmem("buffer_load_dwordx4 %s, %s, %s, s%d offen offset:%d sc1" % (
                v(dst + 4 * i, 4), v(vaddr), s(SW, 4), sSt, 16 * i))
        else:
            raise ValueError(k)
        self.last_issue = A.t

    def pump(self, ins=None, force=0):
        A = self.A
        n = 0
        while True:
            if self.qA and self.ready(self.qA[0]):
                if force > n or A.t - self.last_issue >= self.cfg.a_interval:
                    self.issue(self.qA.popleft()); n += 1
                    if force > n:
                        continue
                return
            if self.qB and self.ready(self.qB[0]):
                if force > n or A.t - self.last_issue >= self.cfg.b_interval:
                    self.issue(self.qB.popleft()); n += 1
                    if force > n:
                        continue
            return

    def burst(self, n):
        save = self.A.in_pump
        self.A.in_pump = True
        self.pump(force=n)
        self.A.in_pump = save

    def force(self, q, done):
        save = self.A.in_pump
        self.A.in_pump = True
        while not done():
            assert q, "needed op was never queued"
            assert self.ready(q[0]), "needed op blocked: %r" % (q[0],)
            self.issue(q.popleft())
        self.A.in_pump = save

    def needB(self, keys):
        self.force(self.qB, lambda: all(k in self.bseq for k in keys))
        self.A.vm_wait(max(self.bseq[k] for k in keys))

    def needA(self, keys, table):
        pend = lambda: not any(op[1] in keys for op in self.qA) and all(k in table for k in keys)
        self.force(self.qA, pend)
        self.A.vm_wait(max(table[k] for k in keys))

    def queue_B(self, tag, base, nks, nt):
        for ks in range(nks):
            for t in range(nt):
                self.qB.append(("B", (tag, ks, t), base, ks * nt + t))

    def queue_x(self, tag, srd, xbase, h, stbase):
        A = self.A
        sx = sXA[h]
        A("s_add_u32 s%d, s%d, %d" % (sx, sR0, xbase + h * 81920))
        if stbase is not None:
            self.queue_stat(tag, stbase, h)
        for b in range(10):
            for hf in range(2):
                self.qA.append(("DMA", (tag, b), srd, sx, b, hf))

    def queue_stat(self, tag, stbase, h):
        for i in range(4):
            pre = "s_add_u32 s%d, s%d, %d" % (sSt, sSL, stbase + h * 4096) if i == 0 else None
            self.qA.append(("STAT", (tag, "st", i), R_RAW, vSL, pre, i))

    def queue_halo(self, tag, srd, xbase):
        self.A("s_mov_b32 s%d, %d" % (sXH, xbase))
        for kk in range(5):
            self.qA.append(("DMAH", (tag, "halo", kk), srd, kk))

    def queue_halo_stat(self, tag, stbase):
        for i in range(4):
            pre = "s_mov_b32 s%d, %d" % (sSt, stbase) if i == 0 else None
            self.qA.append(("STAT", (tag, "hst", i), R_T, vSH, pre, i))

    def queue_direct(self, tag, base, const, tstride, nks):
        for ks in range(nks):
            for aa in range(2):
                self.qA.append(("AD", (tag, ks, aa), base, const + aa * tstride + ks * 1024))

    def poll(self, sflag, target, skip_if_g0=False):
        A = self.A
        lp, dn = self.lab("poll"), self.lab("pdone")
        with self.atomic():
            if skip_if_g0:
                A("s_cmp_eq_u32 s%d, 0" % sG)
                A("s_cbranch_scc1 %s" % dn)
            A("s_mov_b32 s%d, 0x80000" % sSpin)
            A.label(lp)
            A.vmem("buffer_load_dword %s, %s, %s, s%d offen sc1" % (v(vPoll), v(vFL), s(SW, 4), sflag))
            A("s_waitcnt vmcnt(0)")
            A("v_cmp_le_u32 vcc, %d, %s" % (target, v(vPoll)))
            A("s_cmp_eq_u64 vcc, -1")
            A("s_cbranch_scc1 %s" % dn)
            A("s_sub_u32 s%d, s%d, 1" % (sSpin, sSpin))
            A("s_cmp_lg_u32 s%d, 0" % sSpin)
            A("s_cbranch_scc1 %s" % lp)
            A.label(dn)
        if not skip_if_g0:
            A.vm_done = len(A.vm)
        else:
            A.vm.pop()
            A.vm_done = min(A.vm_done, len(A.vm))

    def publish_wait(self, seq):
        self.A.vm_wait(seq)

    def publish_flag(self, val):
        A = self.A
        A("v_mov_b32 %s, %d" % (v(vTmp), val))
        A.vmem("buffer_store_dword %s, %s, %s, s%d offen sc1" % (v(vTmp), v(vFS), s(SW, 4), sFO))

    def barrier(self):
        with self.atomic():
            self.A("s_barrier")

    def publish_now(self, pend):
        if pend is None:
            return
        seq, val = pend
        self.A.vm_wait(seq)
        self.barrier()
        self.publish_flag(val)

    def lds_addr(self, ldsoff, s_):
        hi = ldsoff >= 65536
        return vA[(s_ & 1) + (2 if hi else 0)], ldsoff - (65536 if hi else 0)

    def kloop_lds(self, btag, nc, xtag, first, last, hooks, pend, pub_step):
        A = self.A
        groups = list(self.cfg.groups)
        bar_at = {max(2 * b0 - 1, -1): gi for gi, b0 in enumerate(groups)}
        rd = {}

        def group_barrier(gi):
            nonlocal pend
            b0 = groups[gi]
            b1 = groups[gi + 1] if gi + 1 < len(groups) else 10
            keys = [(xtag, b) for b in range(b0, b1)]
            self.needA(keys, self.lseq)
            A.ds_drain()
            pub = pend is not None and 2 * b0 - 1 >= pub_step
            if pub:
                A.vm_wait(pend[0])
            self.barrier()
            for key in list(self.retire):
                self.lfree.append(self.lslot[key])
            self.retire = []
            if gi > 0:
                for b in range(groups[gi - 1], b0):
                    self.lfree.append(self.lslot[(xtag, b)])
            if pub:
                self.publish_flag(pend[1])
                pend = None

        def read(s_, t):
            off = RB + self.lslot[(xtag, s_ // 2)] * 8192 + t * 2048
            base, imm = self.lds_addr(off, s_)
            rd[(s_, t)] = A.ds("ds_read_b128 %s, %s offset:%d" % (v(R_A + (s_ & 1) * 16 + 4 * t, 4), v(base), imm))

        group_barrier(0)
        for t in range(4):
            read(0, t)
        for s_ in range(20):
            if s_ in hooks:
                hooks[s_]()
            if s_ in bar_at and bar_at[s_] > 0:
                group_barrier(bar_at[s_])
            if first:
                self.needB([(btag, s_, t) for t in range(nc)])
            nread = 0
            for t in range(4):
                if t in (0, 2):
                    A.ds_wait(rd[(s_, t + 1)])
                for c_ in range(nc):
                    acc = R_ACC + 4 * (t * nc + c_)
                    A("v_mfma_f32_16x16x32_bf16 %s, %s, %s, %s" % (
                        v(acc, 4), a(4 * self.bslot[(btag, s_, c_)], 4), v(R_A + (s_ & 1) * 16 + 4 * t, 4),
                        "0" if s_ == 0 else v(acc, 4)))
                    if s_ < 19 and nread < 4:
                        read(s_ + 1, nread); nread += 1
            if last:
                for c_ in range(nc):
                    self.bfree.append(self.bslot[(btag, s_, c_)])
        self.retire = [(xtag, b) for b in range(groups[-1], 10)]
        assert pend is None or True
        return pend

    def kloop_halo(self, btag, tag):
        A = self.A
        self.needA([(tag, "halo", kk) for kk in range(5)], self.lseq)
        self.barrier_retire()
        A("v_add_u32 %s, %d, %s" % (v(vTmp), LH, v(vA[0])))
        A("v_add_u32 %s, %d, %s" % (v(vTmp + 1), LH, v(vA[1])))
        rd = {}

        def read(s_):
            rd[s_] = A.ds("ds_read_b128 %s, %s offset:%d" % (
                v(R_A + 4 * (s_ % 8), 4), v(vTmp + (s_ & 1)), (s_ // 2) * 2048))
        for s_ in range(6):
            read(s_)
        for s_ in range(20):
            A.ds_wait(rd[s_])
            for c_ in range(2):
                acc = R_ACC + 32 + 4 * c_
                A("v_mfma_f32_16x16x32_bf16 %s, %s, %s, %s" % (
                    v(acc, 4), a(4 * self.bslot[(btag, s_, c_)], 4), v(R_A + 4 * (s_ % 8), 4),
                    "0" if s_ == 0 else v(acc, 4)))
            if s_ + 6 < 20:
                read(s_ + 6)

    def barrier_retire(self):
        self.A.ds_drain()
        self.barrier()
        for key in self.retire:
            self.lfree.append(self.lslot[key])
        self.retire = []

    def colsum(self, btag, nc, dst):
        A = self.A
        for s_ in range(20):
            for c_ in range(nc):
                A("v_mfma_f32_16x16x32_bf16 %s, %s, %s, %s" % (
                    v(dst + 4 * c_, 4), a(4 * self.bslot[(btag, s_, c_)], 4), v(vONE, 4),
                    "0" if s_ == 0 else v(dst + 4 * c_, 4)))

    def kloop_direct(self, btag, atag, nks, first, last, hooks):
        A = self.A
        for ks in range(nks):
            if ks in hooks:
                hooks[ks]()
            if first:
                self.needB([(btag, ks, t) for t in range(5)])
            self.needA([(atag, ks, aa) for aa in range(2)], self.aseq)
            for aa in range(2):
                for t in range(5):
                    acc = R_ACC + 4 * (aa * 5 + t)
                    A("v_mfma_f32_16x16x32_bf16 %s, %s, %s, %s" % (
                        v(acc, 4), a(4 * self.bslot[(btag, ks, t)], 4), v(self.aslot[(atag, ks, aa)], 4),
                        "0" if ks == 0 else v(acc, 4)))
            for aa in range(2):
                self.vfree.append(self.aslot[(atag, ks, aa)])
            if last:
                for t in range(5):
                    self.bfree.append(self.bslot[(btag, ks, t)])

    def finalize(self, tag, kind, raw, halo=False):
        A = self.A
        self.needA([(tag, "hst" if halo else "st", i) for i in range(4)], self.aseq)
        for st in (8, 4, 2):
            for i in range(0, st, 2):
                A("v_add_f32 %s, %s, %s" % (v(raw + i), v(raw + i), v(raw + i + st)))
                A("v_add_f32 %s, %s, %s" % (v(raw + i + 1), v(raw + i + 1), v(raw + i + 1 + st)))
        m_, r_, s_ = (vSMH, vSAH, None) if halo else (vSM, vSA, vSS)
        A("v_mul_f32 %s, s%d, %s" % (v(m_), sC640, v(raw)))
        A("v_mul_f32 %s, s%d, %s" % (v(raw + 1), sC640, v(raw + 1)))
        A("v_fma_f32 %s, -%s, %s, %s" % (v(raw + 1), v(m_), v(m_), v(raw + 1)))
        A("v_max_f32 %s, 0, %s" % (v(raw + 1), v(raw + 1)))
        A("v_add_f32 %s, s%d, %s" % (v(raw + 1), sCeps, v(raw + 1)))
        A("v_rsq_f32 %s, %s" % (v(r_), v(raw + 1)))
        vals = [m_, r_]
        if kind == 3:
            A("v_mul_f32 %s, %s, %s" % (v(s_), v(raw + 1), v(r_)))
            A("v_mul_f32 %s, s%d, %s" % (v(r_), sCl2e, v(r_)))
            vals.append(s_)
        if halo:
            return
        for x in vals:
            A("v_mov_b32 %s, %s" % (v(x + 2), v(x)))
        for x in vals:
            A("v_permlane32_swap_b32 %s, %s" % (v(x), v(x + 2)))
        for x in vals:
            A("v_mov_b32 %s, %s" % (v(x + 1), v(x)))
            A("v_mov_b32 %s, %s" % (v(x + 3), v(x + 2)))
        for x in vals:
            A("v_permlane16_swap_b32 %s, %s" % (v(x), v(x + 1)))
            A("v_permlane16_swap_b32 %s, %s" % (v(x + 2), v(x + 3)))

    def stats_partial(self, vals, tmp, stbase, h):
        A = self.A
        s1 = [tmp, tmp + 2]
        s2 = [tmp + 1, tmp + 3]
        for r in range(2):
            A("v_add_f32 %s, %s, %s" % (v(s1[r]), v(vals[r][0]), v(vals[r][1])))
            A("v_mul_f32 %s, %s, %s" % (v(s2[r]), v(vals[r][0]), v(vals[r][0])))
        for i in range(1, 8):
            for r in range(2):
                if i >= 2:
                    A("v_add_f32 %s, %s, %s" % (v(s1[r]), v(s1[r]), v(vals[r][i])))
                A("v_fmac_f32 %s, %s, %s" % (v(s2[r]), v(vals[r][i]), v(vals[r][i])))
        for i in range(4):
            A("v_cndmask_b32 %s, 0, %s, %s" % (v(tmp + i), v(tmp + i), s(sM10, 2)))
        for ror in (8, 4, 2, 1):
            for i in range(4):
                A("v_add_f32_dpp %s, %s, %s row_ror:%d row_mask:0xf bank_mask:0xf" % (
                    v(tmp + i), v(tmp + i), v(tmp + i), ror))
        A("v_cndmask_b32 %s, %s, %s, %s" % (v(tmp), v(tmp), v(tmp + 2), s(sI1, 2)))
        A("v_cndmask_b32 %s, %s, %s, %s" % (v(tmp + 1), v(tmp + 1), v(tmp + 3), s(sI1, 2)))
        A("s_add_u32 s%d, s%d, %d" % (sT, sSS, stbase + h * 4096))
        return A.vmem("buffer_store_dwordx2 %s, %s, %s, s%d offen sc1" % (v(tmp, 2), v(vSO), s(SW, 4), sT))

    def epi_qkv(self, h, with_halo):
        A = self.A
        tiles = [(t, vSM + t, vSA + t, vQW, ((t % 2) * 40 + (8 if h == 0 else 0) + 16 * (t // 2)) * QS)
                 for t in range(4)]
        if with_halo:
            tiles.append((4, vSMH, vSAH, vQWH, 0))
        for t, m_, r_, base, off in tiles:
            for c_ in range(2):
                acc = R_ACC + 4 * (2 * t + c_)
                for r in range(4):
                    A("v_fma_f32 %s, -%s, %s, %s" % (v(acc + r), v(m_), v(vCS1 + 4 * c_ + r), v(acc + r)))
                for r in range(4):
                    A("v_mul_f32 %s, %s, %s" % (v(acc + r), v(r_), v(acc + r)))
                A("v_cvt_pk_bf16_f32 %s, %s, %s" % (v(acc), v(acc), v(acc + 1)))
                A("v_cvt_pk_bf16_f32 %s, %s, %s" % (v(acc + 1), v(acc + 2), v(acc + 3)))
                A.ds("ds_write_b64 %s, %s offset:%d" % (v(base), v(acc, 2), off + c_ * 32))
        self.barrier_retire()

    def attention(self, h, layer):
        A = self.A
        ro = (8 if h == 0 else 0) * QS
        kx = vKX1 if h == 0 else vKX2
        vx = vVX1 if h == 0 else vVX2
        mx = vMX1 if h == 0 else vMX
        Q = [R_ACC, R_ACC + 12]
        KX = [R_ACC + 4, R_ACC + 16]
        KY = [R_ACC + 8, R_ACC + 20]
        V0 = [R_ACC + 24, R_ACC + 32]
        VT = [R_ACC + 28, R_ACC + 36]
        S = [R_A, R_A + 8]
        P = [R_A + 16, R_A + 20]
        mxr = [R_A + 24, R_A + 26]
        O0 = [R_T, R_T + 12]
        OT = [R_T + 4, R_T + 16]
        DN = [R_T + 8, R_T + 20]
        sq = {}
        for hd in range(2):
            sq["q", hd] = A.ds("ds_read_b128 %s, %s offset:%d" % (v(Q[hd], 4), v(vQR), ro + 32 * hd))
            A.ds("ds_read_b128 %s, %s offset:%d" % (v(KX[hd], 4), v(kx), 80 + 32 * hd))
            sq["k", hd] = A.ds("ds_read_b128 %s, %s offset:%d" % (v(KY[hd], 4), v(vQR), ro + 80 + 32 * hd))
        for hd in range(2):
            o = 160 + 40 * hd
            A.ds("ds_read_b64_tr_b16 %s, %s offset:%d" % (v(V0[hd], 2), v(vx), o))
            A.ds("ds_read_b64_tr_b16 %s, %s offset:%d" % (v(V0[hd] + 2, 2), v(vVY), ro + o))
            A.ds("ds_read_b64_tr_b16 %s, %s offset:%d" % (v(VT[hd], 2), v(vx), o + 32))
            sq["v", hd] = A.ds("ds_read_b64_tr_b16 %s, %s offset:%d" % (v(VT[hd] + 2, 2), v(vVY), ro + o + 32))
        masks = [(sQ3, sQ3, sQ2, sQ2), (sQ12, sQ12, sQ3, sQ3)]
        for hd in range(2):
            A.ds_wait(sq["q", hd])
            for i in range(4):
                A("v_cndmask_b32 %s, 0, %s, %s" % (v(Q[hd] + i), v(Q[hd] + i), s(masks[hd][i], 2)))
            A.ds_wait(sq["k", hd])
            A("v_mfma_f32_16x16x32_bf16 %s, %s, %s, 0" % (v(S[hd], 4), v(KX[hd], 4), v(Q[hd], 4)))
            A("v_mfma_f32_16x16x32_bf16 %s, %s, %s, 0" % (v(S[hd] + 4, 4), v(KY[hd], 4), v(Q[hd], 4)))
        for hd in range(2):
            for i in range(8):
                mk = mx + i if i < 4 else vMY + i - 4
                A("v_fma_f32 %s, %s, s%d, %s" % (v(S[hd] + i), v(S[hd] + i), sCsc, v(mk)))
        for hd in range(2):
            m_ = mxr[hd]
            A("v_max3_f32 %s, %s, %s, %s" % (v(m_), v(S[hd]), v(S[hd] + 1), v(S[hd] + 2)))
            A("v_max3_f32 %s, %s, %s, %s" % (v(m_ + 1), v(S[hd] + 3), v(S[hd] + 4), v(S[hd] + 5)))
        for hd in range(2):
            m_ = mxr[hd]
            A("v_max3_f32 %s, %s, %s, %s" % (v(m_), v(m_), v(S[hd] + 6), v(S[hd] + 7)))
        for hd in range(2):
            m_ = mxr[hd]
            A("v_max_f32 %s, %s, %s" % (v(m_), v(m_), v(m_ + 1)))
        for sw in ("v_permlane32_swap_b32", "v_permlane16_swap_b32"):
            for hd in range(2):
                A("v_mov_b32 %s, %s" % (v(mxr[hd] + 1), v(mxr[hd])))
            for hd in range(2):
                A("%s %s, %s" % (sw, v(mxr[hd]), v(mxr[hd] + 1)))
            for hd in range(2):
                A("v_max_f32 %s, %s, %s" % (v(mxr[hd]), v(mxr[hd]), v(mxr[hd] + 1)))
        for hd in range(2):
            for i in range(8):
                A("v_sub_f32 %s, %s, %s" % (v(S[hd] + i), v(S[hd] + i), v(mxr[hd])))
            for i in range(8):
                A("v_exp_f32 %s, %s" % (v(S[hd] + i), v(S[hd] + i)))
        for hd in range(2):
            for i in range(4):
                A("v_cvt_pk_bf16_f32 %s, %s, %s" % (v(P[hd] + i), v(S[hd] + 2 * i), v(S[hd] + 2 * i + 1)))
        for hd in range(2):
            A.ds_wait(sq["v", hd])
            A("v_mfma_f32_16x16x32_bf16 %s, %s, %s, 0" % (v(DN[hd], 4), v(vONE, 4), v(P[hd], 4)))
            A("v_mfma_f32_16x16x32_bf16 %s, %s, %s, 0" % (v(O0[hd], 4), v(V0[hd], 4), v(P[hd], 4)))
            A("v_mfma_f32_16x16x32_bf16 %s, %s, %s, 0" % (v(OT[hd], 4), v(VT[hd], 4), v(P[hd], 4)))
        for hd in range(2):
            A("v_rcp_f32 %s, %s" % (v(DN[hd]), v(DN[hd])))
        for hd in range(2):
            for i in range(4):
                A("v_mul_f32 %s, %s, %s" % (v(O0[hd] + i), v(O0[hd] + i), v(DN[hd])))
            for i in range(4):
                A("v_mul_f32 %s, %s, %s" % (v(OT[hd] + i), v(OT[hd] + i), v(DN[hd])))
        om, ot = R_A, R_A + 4
        for hd in range(2):
            for i in range(2):
                A("v_cvt_pk_bf16_f32 %s, %s, %s" % (v(om + 2 * hd + i), v(O0[hd] + 2 * i), v(O0[hd] + 2 * i + 1)))
                A("v_cvt_pk_bf16_f32 %s, %s, %s" % (v(ot + 2 * hd + i), v(OT[hd] + 2 * i), v(OT[hd] + 2 * i + 1)))
        A("s_add_u32 s%d, s%d, %d" % (sT, sOS, OB[layer] + h * 81920))
        A.vmem("buffer_store_dwordx4 %s, %s, %s, s%d offen sc1" % (v(om, 4), v(vL16), s(SW, 4), sT))
        return A.vmem("buffer_store_dwordx4 %s, %s, %s, s%d offen offset:1024 sc1" % (v(ot, 4), v(vOT), s(SW, 4), sT))

    def epi_glu(self, h, layer):
        A = self.A
        H = R_T
        A("s_add_u32 s%d, s%d, %d" % (sT, sHS, HB[layer] + h * 4 * 49152))
        seq = None
        for c_ in range(3):
            accs = [R_ACC + 4 * (t * 3 + c_) for t in range(4)]
            for t in range(4):
                for r in range(4):
                    A("v_fma_f32 %s, -%s, %s, %s" % (v(accs[t] + r), v(vSM + t), v(vCS3 + 4 * c_ + r), v(accs[t] + r)))
            for t in range(4):
                for r in range(2):
                    A("v_mul_f32 %s, %s, %s" % (v(accs[t] + r), v(vSA + t), v(accs[t] + r)))
            for t in range(4):
                for r in range(2):
                    A("v_exp_f32 %s, %s" % (v(accs[t] + r), v(accs[t] + r)))
            for t in range(4):
                for r in range(2):
                    A("v_fma_f32 %s, %s, %s, %s" % (v(accs[t] + r), v(accs[t] + r), v(vSS + t), v(vSS + t)))
            for t in range(4):
                for r in range(2):
                    A("v_rcp_f32 %s, %s" % (v(accs[t] + r), v(accs[t] + r)))
            for t in range(4):
                for r in range(2):
                    A("v_mul_f32 %s, %s, %s" % (v(accs[t] + r), v(accs[t] + r), v(accs[t] + r + 2)))
            hh = H + 4 * c_
            for t in range(4):
                A("v_cvt_pk_bf16_f32 %s, %s, %s" % (v(hh + t), v(accs[t]), v(accs[t] + 1)))
            A("v_permlane32_swap_b32 %s, %s" % (v(hh), v(hh + 2)))
            A("v_permlane32_swap_b32 %s, %s" % (v(hh + 1), v(hh + 3)))
            A("v_permlane16_swap_b32 %s, %s" % (v(hh), v(hh + 1)))
            A("v_permlane16_swap_b32 %s, %s" % (v(hh + 2), v(hh + 3)))
            seq = A.vmem("buffer_store_dwordx4 %s, %s, %s, s%d offen offset:%d sc1" % (
                v(hh, 4), v(vHO), s(SW, 4), sT, c_ * 256))
        return seq

    def epi_red(self, h, dst_srd, dst_base, stbase, pend=None, final=False):
        A = self.A
        for aa in range(2):
            for t in range(5):
                A.ds("ds_write_b128 %s, %s offset:%d" % (
                    v(vRW), v(R_ACC + 4 * (aa * 5 + t), 4), aa * 16 * TS + t * 64))
        A.ds_drain()
        if pend is not None:
            A.vm_wait(pend[0])
        self.barrier()
        if pend is not None:
            self.publish_flag(pend[1])
        dst = [[R_ACC + 8 * w for w in range(4)], [R_ACC + 32, R_T, R_T + 8, R_T + 16]]
        sq = {}
        for r in range(2):
            for w in range(4):
                for qh in range(2):
                    sq[r, w] = A.ds("ds_read_b128 %s, %s offset:%d" % (
                        v(dst[r][w] + 4 * qh, 4), v(vRR), w * PS + qh * 16 + r * 4 * TS))
        seq = None
        vals = []
        for r in range(2):
            d = dst[r]
            A.ds_wait(sq[r, 1])
            for i in range(8):
                A("v_add_f32 %s, %s, %s" % (v(d[0] + i), v(d[0] + i), v(d[1] + i)))
            res = vRES + 8 * h + 4 * r
            for i in range(4):
                A("v_lshlrev_b32 %s, 16, %s" % (v(d[1] + 2 * i), v(res + i)))
                A("v_and_b32 %s, 0xffff0000, %s" % (v(d[1] + 2 * i + 1), v(res + i)))
            A.ds_wait(sq[r, 3])
            for i in range(8):
                A("v_add_f32 %s, %s, %s" % (v(d[2] + i), v(d[2] + i), v(d[3] + i)))
            for i in range(8):
                A("v_add_f32 %s, %s, %s" % (v(d[0] + i), v(d[0] + i), v(d[1] + i)))
            for i in range(8):
                A("v_add_f32 %s, %s, %s" % (v(d[0] + i), v(d[0] + i), v(d[2] + i)))
            for i in range(4):
                A("v_cvt_pk_bf16_f32 %s, %s, %s" % (v(res + i), v(d[0] + 2 * i), v(d[0] + 2 * i + 1)))
            A("s_add_u32 s%d, s%d, %d" % (sT, sXS, dst_base + h * 81920 + r * 10240))
            seq = A.vmem("buffer_store_dwordx4 %s, %s, %s, s%d offen%s" % (
                v(res, 4), v(vXO), s(dst_srd, 4), sT, "" if final else " sc1"))
            vals.append([d[0] + i for i in range(8)])
        if stbase is not None:
            seq = self.stats_partial(vals, R_ACC + 8, stbase, h)
        return seq

    def prologue(self):
        A = self.A
        A.no_pump += 1
        A("""
        s_cmp_ge_u32 s2, 256
        s_cbranch_scc1 L_main_end
        s_load_dwordx2 s[4:5], s[0:1], 0
        s_load_dwordx2 s[8:9], s[0:1], 72
        s_load_dwordx2 s[12:13], s[0:1], 56
        v_lshrrev_b32 v2, 6, v0
        v_and_b32 v0, 63, v0
        v_readfirstlane_b32 s%d, v2
        """ % sWv)
        A("s_and_b32 s%d, s2, 7" % sT)
        A("s_lshr_b32 s%d, s2, 3" % (sT + 1))
        A("s_lshr_b32 s%d, s%d, 1" % (sG, sT))
        A("s_lshl_b32 s%d, s%d, 2" % (sG, sG))
        A("s_lshr_b32 s%d, s%d, 3" % (sT + 2, sT + 1))
        A("s_add_u32 s%d, s%d, s%d" % (sG, sG, sT + 2))
        A("s_and_b32 s%d, s%d, 1" % (sRP, sT))
        A("s_and_b32 s%d, s%d, 7" % (sC, sT + 1))
        A("s_lshl_b32 s%d, s%d, 3" % (sM, sRP))
        A("s_add_u32 s%d, s%d, s%d" % (sM, sM, sC))
        A("s_mul_i32 s%d, s%d, %d" % (sR0, sG, 128 * 1280))
        A("s_lshl_b32 s%d, s%d, 2" % (sT, sM))
        A("s_add_u32 s%d, s%d, s%d" % (sT, sT, sWv))
        A("s_lshl_b32 s%d, s%d, 2" % (sT + 1, sC))
        A("s_add_u32 s%d, s%d, s%d" % (sT + 1, sT + 1, sWv))
        for dst, src, mul, base in ((sB1, sT, 40960, WQ), (sB2, sT + 1, 25600, WO), (sB3, sT, 61440, WG),
                                    (sB4, sT + 1, 61440, WD)):
            A("s_mul_i32 s%d, s%d, %d" % (dst, src, mul))
            A("s_add_u32 s%d, s%d, %d" % (dst, dst, base))
        A("s_lshl_b32 s%d, s%d, 11" % (sDm, sWv))
        A("s_lshr_b32 s%d, s%d, 1" % (sT + 2, sWv))
        A("s_and_b32 s%d, s%d, 1" % (sT + 3, sWv))
        A("s_lshl_b32 s%d, s%d, 11" % (sDH, sT + 2))
        A("s_lshl_b32 s%d, s%d, 10" % (sT + 4, sT + 3))
        A("s_add_u32 s%d, s%d, s%d" % (sDH, sDH, sT + 4))
        A("s_add_u32 s%d, s%d, %d" % (sDH, sDH, LH))
        A("s_lshl_b32 s%d, s%d, 3" % (sT + 4, sG))
        A("s_lshl_b32 s%d, s%d, 1" % (sT + 5, sRP))
        A("s_add_u32 s%d, s%d, s%d" % (sT + 5, sT + 5, sT + 4))
        A("s_mul_i32 s%d, s%d, 20480" % (sOA, sT + 5))
        A("s_mul_i32 s%d, s%d, 5120" % (sT + 6, sWv))
        A("s_add_u32 s%d, s%d, s%d" % (sOA, sOA, sT + 6))
        A("s_mul_i32 s%d, s%d, 49152" % (sHA, sT + 5))
        A("s_mul_i32 s%d, s%d, 12288" % (sT + 6, sWv))
        A("s_add_u32 s%d, s%d, s%d" % (sHA, sHA, sT + 6))
        A("s_add_u32 s%d, s%d, s%d" % (sT + 6, sT + 4, sWv))
        A("s_mul_i32 s%d, s%d, 20480" % (sOS, sT + 6))
        A("s_mul_i32 s%d, s%d, 1280" % (sT + 6, sM))
        A("s_add_u32 s%d, s%d, s%d" % (sOS, sOS, sT + 6))
        A("s_mul_i32 s%d, s%d, 49152" % (sHS, sT + 4))
        A("s_mul_i32 s%d, s%d, 768" % (sT + 6, sT))
        A("s_add_u32 s%d, s%d, s%d" % (sHS, sHS, sT + 6))
        A("s_lshl_b32 s%d, s%d, 4" % (sT + 6, sT + 5))
        A("s_mul_i32 s%d, s%d, 1280" % (sXS, sT + 6))
        A("s_lshl_b32 s%d, s%d, 6" % (sSS, sT + 6))
        A("s_lshl_b32 s%d, s%d, 13" % (sSL, sG))
        A("s_lshl_b32 s%d, s%d, 8" % (sFG, sG))
        A("s_add_u32 s%d, s%d, %d" % (sFG, sFG, FLAGS))
        A("s_sub_u32 s%d, s%d, 256" % (sFP, sFG))
        A("s_lshl_b32 s%d, s%d, 2" % (sFO, sM))
        A("s_add_u32 s%d, s%d, s%d" % (sFO, sFO, sFG))
        for r, val in ((sQ3, 0x0000FFFFFFFFFFFF), (sQ2, 0x00000000FFFFFFFF), (sQ12, 0x0000FFFFFFFF0000),
                       (sI1, 0x0002000200020002), (sM10, 0x03FF03FF03FF03FF)):
            A("s_mov_b32 s%d, 0x%x" % (r, val & 0xFFFFFFFF))
            A("s_mov_b32 s%d, 0x%x" % (r + 1, val >> 32))
        A("s_mov_b32 s%d, 0x%x" % (sC640, f2u(1.0 / 640)))
        A("s_mov_b32 s%d, 0x%x" % (sCeps, f2u(1e-5)))
        A("s_mov_b32 s%d, 0x%x" % (sCl2e, f2u(-LOG2E)))
        A("s_mov_b32 s%d, 0x%x" % (sCsc, f2u(LOG2E * 20 ** -0.5)))
        j, q, t0, t1, t2, oob = R_T, R_T + 1, R_T + 2, R_T + 3, R_T + 4, R_T + 5
        wh, wl = sT + 2, sT + 3
        A("v_and_b32 %s, 15, v0" % v(j))
        A("v_lshrrev_b32 %s, 4, v0" % v(q))
        A("v_mov_b32 %s, 0x%x" % (v(oob), OOB))
        A("v_lshlrev_b32 %s, 4, v0" % v(vL16))
        A("v_lshrrev_b32 %s, 1, %s" % (v(t0), v(j)))
        A("v_xor_b32 %s, %s, %s" % (v(t0), v(t0), v(q)))
        A("v_lshlrev_b32 %s, 4, %s" % (v(t0), v(t0)))
        A("v_lshl_add_u32 %s, %s, 7, %s" % (v(vA[0]), v(j), v(t0)))
        A("v_xor_b32 %s, 64, %s" % (v(vA[1]), v(vA[0])))
        A("v_add_u32 %s, 0x10000, %s" % (v(vA[2]), v(vA[0])))
        A("v_add_u32 %s, 0x10000, %s" % (v(vA[3]), v(vA[1])))
        A("v_lshrrev_b32 %s, 3, v0" % v(t0))
        A("v_lshlrev_b32 %s, 1, %s" % (v(t0), v(t0)))
        A("s_lshl_b32 s%d, s%d, 5" % (sT + 4, wh))
        A("s_add_u32 s%d, s%d, s%d" % (sT + 4, sT + 4, wl))
        A("v_add_u32 %s, s%d, %s" % (v(t1), sT + 4, v(t0)))
        A("v_mul_u32_u24 %s, 1280, %s" % (v(t1), v(t1)))
        A("v_and_b32 %s, 7, v0" % v(t2))
        A("v_xor_b32 %s, %s, %s" % (v(t2), v(t2), v(q)))
        A("v_lshlrev_b32 %s, 4, %s" % (v(t2), v(t2)))
        A("v_add_u32 %s, %s, %s" % (v(vD[0]), v(t1), v(t2)))
        A("v_xor_b32 %s, 64, %s" % (v(vD[1]), v(t2)))
        A("v_add_u32 %s, %s, %s" % (v(vD[1]), v(t1), v(vD[1])))
        A("v_add_u32 %s, %d, %s" % (v(vD[1]), 16 * 1280, v(vD[1])))
        A("v_add_u32 %s, s%d, %s" % (v(t1), wl, v(t0)))
        A("v_mul_u32_u24 %s, 1280, %s" % (v(t1), v(t1)))
        A("s_lshl_b32 s%d, s%d, 6" % (sT + 4, wl))
        A("v_xor_b32 %s, s%d, %s" % (v(t2), sT + 4, v(t2)))
        A("v_add_u32 %s, %s, %s" % (v(t1), v(t1), v(t2)))
        A("s_lshl_b32 s%d, s%d, 7" % (sT + 4, wh))
        A("s_add_u32 s%d, s%d, s%d" % (sT + 4, sT + 4, sR0))
        A("s_sub_u32 s%d, s%d, %d" % (sT + 4, sT + 4, 16 * 1280))
        A("s_cmp_eq_u32 s%d, 0" % sG)
        A("s_cselect_b32 s%d, 0x%x, s%d" % (sT + 4, OOB, sT + 4))
        A("v_add_u32 %s, s%d, %s" % (v(vDH), sT + 4, v(t1)))
        A("s_lshl_b32 s%d, s%d, 6" % (sT + 4, sWv))
        A("s_add_u32 s%d, s%d, %d" % (sT + 4, sT + 4, LQ))
        A("v_lshlrev_b32 %s, 3, %s" % (v(t0), v(q)))
        A("v_add_u32 %s, s%d, %s" % (v(t0), sT + 4, v(t0)))
        A("v_mul_u32_u24 %s, %d, %s" % (v(t1), QS, v(j)))
        A("v_add_u32 %s, %s, %s" % (v(vQW), v(t0), v(t1)))
        A("v_lshrrev_b32 %s, 3, %s" % (v(t1), v(j)))
        A("v_mul_u32_u24 %s, 32, %s" % (v(t1), v(t1)))
        A("v_add_u32 %s, %s, %s" % (v(t1), v(t1), v(j)))
        A("v_mul_u32_u24 %s, %d, %s" % (v(t1), QS, v(t1)))
        A("v_add_u32 %s, %s, %s" % (v(vQWH), v(t0), v(t1)))
        A("s_mul_i32 s%d, s%d, 40" % (sT + 4, wl))
        A("s_lshl_b32 s%d, s%d, 4" % (sT + 5, wh))
        A("s_mul_i32 s%d, s%d, %d" % (sT + 6, sT + 4, QS))
        A("s_add_u32 s%d, s%d, %d" % (sT + 6, sT + 6, LQ))
        A("v_min_u32 %s, 2, %s" % (v(t0), v(q)))
        A("v_lshlrev_b32 %s, 4, %s" % (v(t0), v(t0)))
        A("v_add_u32 %s, s%d, %s" % (v(t0), sT + 6, v(t0)))
        A("v_add_u32 %s, s%d, %s" % (v(t1), sT + 5, v(j)))
        A("v_mul_u32_u24 %s, %d, %s" % (v(t2), QS, v(t1)))
        A("v_add_u32 %s, %s, %s" % (v(vQR), v(t0), v(t2)))
        A("v_mov_b32 %s, %s" % (v(vKX1), v(vQR)))
        A("v_cmp_gt_u32 vcc, 8, %s" % v(t1))
        A("v_subrev_u32 %s, %d, %s" % (v(vKX2), 8 * QS, v(vQR)))
        A("v_add_u32 %s, %d, %s" % (v(t2), 40 * QS, v(vKX2)))
        A("v_cndmask_b32 %s, %s, %s, vcc" % (v(vKX2), v(vKX2), v(t2)))
        A("v_lshrrev_b32 %s, 2, %s" % (v(t1), v(j)))
        A("v_lshl_add_u32 %s, %s, 2, %s" % (v(t1), v(q), v(t1)))
        A("v_add_u32 %s, s%d, %s" % (v(t1), sT + 5, v(t1)))
        A("v_and_b32 %s, 3, %s" % (v(t0), v(j)))
        A("v_lshlrev_b32 %s, 3, %s" % (v(t0), v(t0)))
        A("v_add_u32 %s, s%d, %s" % (v(t0), sT + 6, v(t0)))
        A("v_mul_u32_u24 %s, %d, %s" % (v(t2), QS, v(t1)))
        A("v_add_u32 %s, %s, %s" % (v(vVY), v(t0), v(t2)))
        A("v_mov_b32 %s, %s" % (v(vVX1), v(vVY)))
        A("v_cmp_gt_u32 vcc, 8, %s" % v(t1))
        A("v_subrev_u32 %s, %d, %s" % (v(vVX2), 8 * QS, v(vVY)))
        A("v_add_u32 %s, %d, %s" % (v(t2), 40 * QS, v(vVX2)))
        A("v_cndmask_b32 %s, %s, %s, vcc" % (v(vVX2), v(vVX2), v(t2)))
        A("s_mul_i32 s%d, s%d, %d" % (sT + 4, sWv, PS))
        A("s_add_u32 s%d, s%d, %d" % (sT + 4, sT + 4, LR))
        A("v_mul_u32_u24 %s, %d, %s" % (v(t0), TS, v(j)))
        A("v_lshl_add_u32 %s, %s, 4, %s" % (v(t0), v(q), v(t0)))
        A("v_add_u32 %s, s%d, %s" % (v(vRW), sT + 4, v(t0)))
        A("s_mul_i32 s%d, s%d, %d" % (sT + 4, sWv, 8 * TS))
        A("s_add_u32 s%d, s%d, %d" % (sT + 4, sT + 4, LR))
        A("v_mul_u32_u24 %s, %d, %s" % (v(t0), TS, v(q)))
        A("v_min_u32 %s, 9, %s" % (v(t1), v(j)))
        A("v_lshl_add_u32 %s, %s, 5, %s" % (v(t0), v(t1), v(t0)))
        A("v_add_u32 %s, s%d, %s" % (v(vRR), sT + 4, v(t0)))
        A("s_lshl_b32 s%d, s%d, 4" % (sT + 4, wl))
        A("s_add_u32 s%d, s%d, s%d" % (sT + 4, sT + 4, wh))
        A("v_lshlrev_b32 %s, 1, %s" % (v(t0), v(q)))
        A("v_add_u32 %s, s%d, %s" % (v(t0), sT + 4, v(t0)))
        A("v_mul_u32_u24 %s, 1280, %s" % (v(t1), v(t0)))
        A("v_lshl_add_u32 %s, %s, 4, %s" % (v(t1), v(j), v(t1)))
        A("s_mul_i32 s%d, s%d, 160" % (sT + 5, sC))
        A("v_add_u32 %s, s%d, %s" % (v(t1), sT + 5, v(t1)))
        A("v_cndmask_b32 %s, %s, %s, %s" % (v(vXO), v(oob), v(t1), s(sM10, 2)))
        A("v_lshl_add_u32 %s, %s, 3, %s" % (v(t1), v(j), v(t0)))
        A("v_lshlrev_b32 %s, 6, %s" % (v(t1), v(t1)))
        A("s_lshl_b32 s%d, s%d, 3" % (sT + 5, sC))
        A("v_add_u32 %s, s%d, %s" % (v(t1), sT + 5, v(t1)))
        A("v_cmp_gt_u32 vcc, 2, %s" % v(j))
        A("v_cndmask_b32 %s, %s, %s, vcc" % (v(vSO), v(oob), v(t1)))
        A("v_lshrrev_b32 %s, 1, %s" % (v(t0), v(q)))
        A("v_lshlrev_b32 %s, 5, %s" % (v(t0), v(t0)))
        A("v_lshl_add_u32 %s, %s, 1, %s" % (v(t0), v(j), v(t0)))
        A("v_and_b32 %s, 1, %s" % (v(t1), v(q)))
        A("v_add_u32 %s, %s, %s" % (v(t0), v(t0), v(t1)))
        A("v_lshlrev_b32 %s, 6, %s" % (v(vSL), v(t0)))
        A("v_and_b32 %s, 7, %s" % (v(t0), v(j)))
        A("v_lshrrev_b32 %s, 3, %s" % (v(t1), v(j)))
        A("v_lshl_add_u32 %s, %s, 1, %s" % (v(t0), v(t0), v(t1)))
        A("v_lshlrev_b32 %s, 6, %s" % (v(t0), v(t0)))
        A("s_sub_u32 s%d, s%d, 1024" % (sT + 4, sSL))
        A("s_cmp_eq_u32 s%d, 0" % sG)
        A("s_cselect_b32 s%d, 0x%x, s%d" % (sT + 4, OOB, sT + 4))
        A("v_add_u32 %s, s%d, %s" % (v(vSH), sT + 4, v(t0)))
        A("v_cmp_gt_u32 vcc, 16, v0")
        A("v_cndmask_b32 %s, %s, %s, vcc" % (v(vOT), v(oob), v(vL16)))
        A("v_mul_u32_u24 %s, 49152, %s" % (v(t0), v(q)))
        A("v_lshl_add_u32 %s, %s, 4, %s" % (v(vHO), v(j), v(t0)))
        A("v_lshlrev_b32 %s, 2, %s" % (v(vFL), v(j)))
        A("v_or_b32 %s, s%d, v0" % (v(t0), sWv))
        A("v_cmp_eq_u32 vcc, 0, %s" % v(t0))
        A("v_cndmask_b32_e64 %s, %s, 0, vcc" % (v(vFS), v(oob)))
        for i in range(4):
            A("v_mov_b32 %s, 0x3f803f80" % v(vONE + i))
        A("v_mov_b32 %s, 0x%x" % (v(t2), f2u(-1e30)))
        A("s_cmp_eq_u32 s%d, 0" % sG)
        A("s_cselect_b32 s%d, 0, 1" % (sT + 4))
        A("s_or_b32 s%d, s%d, s%d" % (sT + 4, sT + 4, wh))
        A("s_cmp_eq_u32 s%d, 0" % (sT + 4))
        A("s_cselect_b32 s%d, 0x%x, 0" % (sT + 4, f2u(-1e30)))
        for r in range(4):
            A("v_lshl_add_u32 %s, %s, 2, %d" % (v(t0), v(q), r))
            A("v_cmp_lt_u32 vcc, %s, %s" % (v(j), v(t0)))
            A("v_cndmask_b32_e64 %s, %s, 0, vcc" % (v(vMX + r), v(t2)))
            A("v_cmp_gt_u32 vcc, 8, %s" % v(t0))
            A("v_cndmask_b32 %s, %s, %s, vcc" % (v(vMX + r), v(t2), v(vMX + r)))
            A("v_min_f32 %s, s%d, %s" % (v(vMX1 + r), sT + 4, v(vMX + r)))
            A("v_sub_u32 %s, %s, %s" % (v(t1), v(j), v(t0)))
            A("v_cmp_gt_u32 vcc, 8, %s" % v(t1))
            A("v_cndmask_b32_e64 %s, %s, 0, vcc" % (v(vMY + r), v(t2)))
        A("s_waitcnt lgkmcnt(0)")
        A("s_and_b32 s5, s5, 0xffff\ns_mov_b32 s6, %d\ns_mov_b32 s7, 0x20000" % XBYTES)
        A("s_and_b32 s9, s9, 0xffff\ns_mov_b32 s10, %d\ns_mov_b32 s11, 0x20000" % WS_BYTES)
        A("s_and_b32 s13, s13, 0xffff\ns_mov_b32 s14, %d\ns_mov_b32 s15, 0x20000" % XBYTES)
        A.no_pump -= 1

    def s0(self):
        A = self.A
        seqs = []
        for h in range(2):
            for r in range(2):
                A("s_add_u32 s%d, s%d, %d" % (sT, sXS, h * 81920 + r * 10240))
                seqs.append(A.vmem("buffer_load_dwordx4 %s, %s, %s, s%d offen" % (
                    v(vRES + 8 * h + 4 * r, 4), v(vXO), s(SX, 4), sT)))
        return seqs

    def s0_finish(self, seqs):
        A = self.A
        seq = None
        for h in range(2):
            A.vm_wait(seqs[2 * h + 1])
            vals = []
            for r in range(2):
                d = R_ACC + 16 * r
                for i in range(4):
                    A("v_lshlrev_b32 %s, 16, %s" % (v(d + 2 * i), v(vRES + 8 * h + 4 * r + i)))
                    A("v_and_b32 %s, 0xffff0000, %s" % (v(d + 2 * i + 1), v(vRES + 8 * h + 4 * r + i)))
                vals.append([d + i for i in range(8)])
            seq = self.stats_partial(vals, R_ACC + 32 + 4 * h, ST[0], h)
        return seq

    def build(self):
        A = self.A
        cfg = self.cfg
        self.retire = []
        self.prologue()
        self.stamp("start")
        for l in range(2):
            self.queue_B(("q", l), sB1, 20, 2)
            self.queue_B(("o", l), sB2, 5, 5)
            self.queue_B(("g", l), sB3, 20, 3)
            self.queue_B(("d", l), sB4, 12, 5)
        ring_P = [R_P + 4 * i for i in range(10)]
        ring_X = [R_A + 4 * i for i in range(8)] + [R_ACC + 40, R_ACC + 44]

        with self.atomic():
            rs = self.s0()
        self.queue_x(("x", 0, 0), SX, 0, 0, None)
        self.burst(8)
        pend = (self.s0_finish(rs), 1)
        self.queue_halo(("x", 0, 0), SX, 0)
        self.queue_x(("x", 0, 1), SX, 0, 1, None)
        fl = 1
        for l in range(2):
            xs_srd, xs_base, xs_st = (SX, 0, ST[0]) if l == 0 else (SW, X2, ST[2])
            q_, o_, g_, d_ = ("q", l), ("o", l), ("g", l), ("d", l)
            A.comment("P1 layer %d" % l)
            t0, t1 = ("x", l, 0), ("x", l, 1)
            hooks = {}
            if l == 1:
                hooks[2] = lambda: self.finalize(t0, 1, R_RAW)
            pend = self.kloop_lds(q_, 2, t0, True, False, hooks, pend, cfg.pub_s1 if l else 0)
            self.publish_now(pend); pend = None
            self.stamp("P1k%d" % l)
            if l == 0:
                self.colsum(q_, 2, vCS1)
                self.poll(sFG, 1)
                self.poll(sFP, 1, skip_if_g0=True)
                self.queue_stat(t0, ST[0], 0)
                self.queue_halo_stat(t0, ST[0])
                self.burst(8)
            else:
                self.poll(sFP, fl, skip_if_g0=True)
                self.queue_halo(t0, xs_srd, xs_base)
                self.queue_halo_stat(t0, xs_st)
                self.burst(9)
                self.poll(sFG, fl)
                self.queue_x(t1, xs_srd, xs_base, 1, xs_st)
            self.kloop_halo(q_, t0)
            if l == 0:
                self.finalize(t0, 1, R_RAW)
                self.queue_stat(t1, ST[0], 1)
            self.finalize(t0, 1, R_T, halo=True)
            self.epi_qkv(0, True)
            fl += 1
            pend = (self.attention(0, l), fl)
            self.stamp("P1e%d" % l)
            A.comment("P2 layer %d" % l)
            hooks = {2: lambda: self.finalize(t1, 1, R_RAW)}
            pend = self.kloop_lds(q_, 2, t1, False, True, hooks, pend, cfg.pub_s1)
            self.publish_now(pend); pend = None
            self.stamp("P2k%d" % l)
            self.vfree = collections.deque(ring_P)
            self.poll(sFG, fl)
            self.queue_direct(("oa", l, 0), sOA, OB[l], 20480, 5)
            self.epi_qkv(1, False)
            fl += 1
            pend = (self.attention(1, l), fl)
            self.stamp("P2e%d" % l)
            A.comment("P3 layer %d" % l)
            self.vfree.extend(ring_X)
            self.kloop_direct(o_, ("oa", l, 0), 5, True, False, {2: self.barrier})
            seq = self.epi_red(0, SW, X1[l], ST[1 + 2 * l], pend)
            self.publish_now((seq, fl + 1))
            self.stamp("P3e%d" % l)
            self.burst(6)
            self.poll(sFG, fl)
            fl += 1
            self.queue_direct(("oa", l, 1), sOA, OB[l] + 81920, 20480, 5)
            A.comment("P4 layer %d" % l)
            self.kloop_direct(o_, ("oa", l, 1), 5, False, True, {})
            self.stamp("P4k%d" % l)
            self.vfree = collections.deque()
            t0, t1 = ("y", l, 0), ("y", l, 1)
            self.poll(sFG, fl)
            self.queue_x(t0, SW, X1[l], 0, ST[1 + 2 * l])
            fl += 1
            pend = (self.epi_red(1, SW, X1[l], ST[1 + 2 * l]), fl)
            self.stamp("P4e%d" % l)
            A.comment("P5 layer %d" % l)

            def h5(fl=fl, t1=t1, l=l):
                self.poll(sFG, fl)
                self.queue_x(t1, SW, X1[l], 1, ST[1 + 2 * l])
            hooks = {2: lambda: self.finalize(t0, 3, R_RAW), cfg.poll_s3: h5}
            pend = self.kloop_lds(g_, 3, t0, True, False, hooks, pend, cfg.pub_s3)
            assert pend is None
            if l == 0:
                self.colsum(g_, 3, vCS3)
            self.stamp("P5k%d" % l)
            fl += 1
            pend = (self.epi_glu(0, l), fl)
            self.stamp("P5e%d" % l)
            A.comment("P6 layer %d" % l)

            def h6(fl=fl, l=l):
                self.vfree = collections.deque(ring_P)
                self.poll(sFG, fl)
                self.queue_direct(("ha", l, 0), sHA, HB[l], 49152, 12)
            hooks = {2: lambda: self.finalize(t1, 3, R_RAW), cfg.poll_s3: h6}
            pend = self.kloop_lds(g_, 3, t1, False, True, hooks, pend, cfg.pub_s3)
            assert pend is None
            self.vfree.extend(ring_X[:8])
            self.stamp("P6k%d" % l)
            fl += 1
            pend = (self.epi_glu(1, l), fl)
            self.vfree.extend(ring_X[8:])
            self.stamp("P6e%d" % l)
            A.comment("P7 layer %d" % l)
            dst = (SW, X2, ST[2]) if l == 0 else (SO, 0, None)

            def h7(pend=pend):
                A.vm_wait(pend[0])
                self.barrier_retire()
                self.publish_flag(pend[1])
            self.kloop_direct(d_, ("ha", l, 0), 12, True, False, {cfg.pub_s4: h7})
            self.stamp("P7k%d" % l)
            seq = self.epi_red(0, dst[0], dst[1], dst[2], None, final=(l == 1))
            if l == 0:
                self.publish_now((seq, fl + 1))
            else:
                A.ds_drain()
                self.barrier()
            self.stamp("P7e%d" % l)
            self.burst(6)
            self.poll(sFG, fl)
            fl += 1
            self.queue_direct(("ha", l, 1), sHA, HB[l] + 4 * 49152, 49152, 12)
            A.comment("P8 layer %d" % l)
            self.kloop_direct(d_, ("ha", l, 1), 12, False, True, {})
            self.stamp("P8k%d" % l)
            self.vfree = collections.deque()
            if l == 0:
                self.poll(sFG, fl)
                self.queue_x(("x", 1, 0), SW, X2, 0, ST[2])
            fl += 1
            pend = (self.epi_red(1, dst[0], dst[1], dst[2], None, final=(l == 1)), fl)
            self.stamp("P8e%d" % l)
        assert not self.qA and not self.qB
        if cfg.stamps:
            A.no_pump += 1
            A("s_waitcnt vmcnt(0)")
            self.stamp("end")
            A("s_lshl_b32 s%d, s2, 2" % sT)
            A("s_add_u32 s%d, s%d, s%d" % (sT, sT, sWv))
            A("s_lshl_b32 s%d, s%d, 7" % (sT, sT))
            A("s_add_u32 s%d, s%d, %d" % (sT, sT, DBG))
            A("v_cmp_eq_u32 vcc, 0, v0")
            A("v_mov_b32 v2, 0x%x" % OOB)
            A("v_cndmask_b32_e64 v2, v2, 0, vcc")
            for i in range(self.stampn):
                A("v_mov_b32 v3, s%d" % (sStamp + i))
                A("buffer_store_dword v3, v2, %s, s%d offen offset:%d" % (s(SW, 4), sT, 4 * i))
        A("s_waitcnt vmcnt(0)")
        A.label("L_main_end")
        A("s_endpgm")
        return A.text()


def prep_kernel():
    A = Asm()
    A("""
    s_cmp_ge_u32 s2, 256
    s_cbranch_scc1 L_prep_end
    s_load_dwordx4 s[24:27], s[0:1], 8
    s_load_dwordx4 s[28:31], s[0:1], 32
    s_load_dwordx2 s[32:33], s[0:1], 48
    s_load_dwordx2 s[34:35], s[0:1], 72
    v_lshrrev_b32 v2, 6, v0
    v_and_b32 v0, 63, v0
    v_readfirstlane_b32 s36, v2
    s_lshl_b32 s37, s2, 2
    s_add_u32 s37, s37, s36
    v_and_b32 v3, 15, v0
    v_lshrrev_b32 v4, 4, v0
    v_lshlrev_b32 v1, 4, v0
    s_waitcnt lgkmcnt(0)
    """)
    srds = {"q": (4, 24, 640 * 3840), "o": (8, 26, 640 * 1280), "g": (12, 28, 640 * 3072), "u": (16, 30, 640 * 3072),
            "d": (20, 32, 1536 * 1280), "w": (40, 34, WS_BYTES)}
    for k, (r, src, n) in srds.items():
        A("s_mov_b32 s%d, s%d\ns_and_b32 s%d, s%d, 0xffff\ns_mov_b32 s%d, %d\ns_mov_b32 s%d, 0x20000" % (
            r, src, r + 1, src + 1, r + 2, n, r + 3))
    A("""
    s_cmp_ge_u32 s37, 16
    s_cbranch_scc1 L_prep_nf
    s_lshl_b32 s50, s37, 8
    s_add_u32 s50, s50, %d
    v_lshlrev_b32 v5, 2, v0
    v_mov_b32 v6, 0
    buffer_store_dword v6, v5, s[40:43], s50 offen
    L_prep_nf:
    """ % FLAGS)

    def div(dst, src, d, tmp=None):
        A("s_mul_hi_u32 s%d, s%d, 0x%x" % (dst, src, -(-(1 << 32) // d)))

    def gather(srd, stride, voff, rows=None):
        for e in range(8):
            op = "buffer_load_ushort"
            r = rows[e] if rows else e
            off = r * stride
            if off < 4096:
                A("%s v%d, %s, %s, 0 offen offset:%d" % (op, 16 + e, v(voff), s(srd, 4), off))
            else:
                A("s_mov_b32 s51, %d" % off)
                A("%s v%d, %s, %s, s51 offen" % (op, 16 + e, v(voff), s(srd, 4)))

    def loop(name, count, base, body):
        A("s_mov_b32 s44, s37")
        A.label("L_%s" % name)
        A("s_cmp_ge_u32 s44, %d" % count)
        A("s_cbranch_scc1 L_%s_done" % name)
        body()
        A("s_waitcnt vmcnt(0)")
        for i in range(4):
            A("v_lshl_or_b32 v%d, v%d, 16, v%d" % (24 + i, 17 + 2 * i, 16 + 2 * i))
        A("s_lshl_b32 s50, s44, 10")
        A("s_add_u32 s50, s50, %d" % base)
        A("buffer_store_dwordx4 v[24:27], v1, s[40:43], s50 offen")
        A("s_nop 1")
        A("s_add_u32 s44, s44, 1024")
        A("s_branch L_%s" % name)
        A.label("L_%s_done" % name)

    def body_q():
        div(45, 44, 40)
        A("s_mul_i32 s46, s45, 40\ns_sub_u32 s46, s44, s46")
        A("s_lshr_b32 s47, s46, 1\ns_and_b32 s46, s46, 1")
        A("s_lshr_b32 s48, s45, 2\ns_and_b32 s45, s45, 3")
        A("s_lshl_b32 s45, s45, 3\ns_lshl_b32 s46, s46, 2\ns_add_u32 s45, s45, s46")
        A("v_lshrrev_b32 v5, 2, v3\nv_add_u32 v5, s45, v5")
        A("v_mul_u32_u24 v6, 26, v5\nv_lshrrev_b32 v6, 8, v6")
        A("v_mul_u32_u24 v7, 600, v6\nv_lshl_add_u32 v7, v5, 2, v7")
        A("v_and_b32 v8, 3, v3\nv_add_u32 v7, v7, v8")
        A("s_mul_i32 s48, s48, 40\nv_add_u32 v7, s48, v7\nv_lshlrev_b32 v7, 1, v7")
        A("s_lshl_b32 s47, s47, 5\nv_lshl_add_u32 v8, v4, 3, s47\nv_mul_u32_u24 v8, 3840, v8\nv_add_u32 v7, v7, v8")
        A("v_mov_b32 v8, 0x%x\nv_cmp_gt_u32 vcc, 30, v5\nv_cndmask_b32 v7, v8, v7, vcc" % OOB)
        gather(4, 3840, 7)

    def body_o():
        div(45, 44, 25)
        A("s_mul_i32 s46, s45, 25\ns_sub_u32 s46, s44, s46")
        div(47, 46, 5)
        A("s_mul_i32 s48, s47, 5\ns_sub_u32 s46, s46, s48")
        A("s_lshr_b32 s48, s45, 2\ns_and_b32 s45, s45, 3")
        A("s_mul_i32 s45, s45, 5\ns_add_u32 s47, s47, s45\ns_lshl_b32 s47, s47, 2")
        A("v_add_u32 v5, s47, v4")
        A("v_mul_u32_u24 v6, 205, v5\nv_lshrrev_b32 v6, 10, v6")
        A("v_mul_u32_u24 v7, 20, v6\nv_lshl_add_u32 v7, v5, 2, v7")
        A("v_mul_u32_u24 v7, 1280, v7")
        A("s_mul_i32 s48, s48, 80\ns_lshl_b32 s46, s46, 4\ns_add_u32 s48, s48, s46")
        A("v_add_u32 v8, s48, v3\nv_lshl_add_u32 v7, v8, 1, v7")
        gather(8, 1280, 7, rows=[0, 1, 2, 3, 20, 21, 22, 23])

    def body_g():
        div(45, 44, 60)
        A("s_mul_i32 s46, s45, 60\ns_sub_u32 s46, s44, s46")
        div(47, 46, 3)
        A("s_mul_i32 s48, s47, 3\ns_sub_u32 s46, s46, s48")
        A("s_mul_i32 s45, s45, 24\ns_lshl_b32 s46, s46, 3\ns_add_u32 s45, s45, s46")
        A("v_lshrrev_b32 v5, 2, v3\nv_lshlrev_b32 v5, 1, v5\nv_and_b32 v6, 1, v3\nv_add_u32 v5, v5, v6")
        A("v_add_u32 v5, s45, v5\nv_lshlrev_b32 v7, 1, v5")
        A("s_lshl_b32 s47, s47, 5\nv_lshl_add_u32 v8, v4, 3, s47\nv_mul_u32_u24 v8, 3072, v8\nv_add_u32 v7, v7, v8")
        A("s_mov_b32 exec_lo, 0x33333333\ns_mov_b32 exec_hi, 0x33333333")
        gather(12, 3072, 7)
        A("s_mov_b32 exec_lo, 0xcccccccc\ns_mov_b32 exec_hi, 0xcccccccc")
        gather(16, 3072, 7)
        A("s_mov_b64 exec, -1")

    def body_d():
        div(45, 44, 60)
        A("s_mul_i32 s46, s45, 60\ns_sub_u32 s46, s44, s46")
        div(47, 46, 5)
        A("s_mul_i32 s48, s47, 5\ns_sub_u32 s46, s46, s48")
        A("s_lshr_b32 s48, s45, 2\ns_and_b32 s45, s45, 3")
        A("s_mul_i32 s45, s45, 12\ns_add_u32 s47, s47, s45\ns_lshl_b32 s47, s47, 5")
        A("v_lshl_add_u32 v7, v4, 3, s47\nv_mul_u32_u24 v7, 1280, v7")
        A("s_mul_i32 s48, s48, 80\ns_lshl_b32 s46, s46, 4\ns_add_u32 s48, s48, s46")
        A("v_add_u32 v8, s48, v3\nv_lshl_add_u32 v7, v8, 1, v7")
        gather(20, 1280, 7)

    loop("pq", 2560, WQ, body_q)
    loop("po", 800, WO, body_o)
    loop("pg", 3840, WG, body_g)
    loop("pd", 1920, WD, body_d)
    A("s_waitcnt vmcnt(0)")
    A.label("L_prep_end")
    A("s_endpgm")
    return A.text()


HEADER = """; Fused 2 x [LN -> QKV -> dilated local attention -> Wo -> +x ; LN -> sigmoid-GLU -> +x], gfx950.
; d_in: 0 A_x, 8 wqkv, 16 wo, 24 B_x (unused by the reference), 32 w_gate, 40 w_up, 48 w_down; 56 out; 64 debug; 72 ws
"""


def kd(name, vg, sg, acc):
    return """.amdhsa_kernel %s
  .amdhsa_next_free_vgpr %d
  .amdhsa_next_free_sgpr %d
  .amdhsa_accum_offset %d
  .amdhsa_group_segment_fixed_size 0
  .amdhsa_kernarg_size 80
  .amdhsa_user_sgpr_count 2
  .amdhsa_user_sgpr_kernarg_segment_ptr 1
  .amdhsa_system_sgpr_workgroup_id_x 1
.end_amdhsa_kernel
""" % (name, vg, sg, acc)


def generate(cfg):
    m = Main(cfg)
    body = m.build()
    out = HEADER
    out += "; @launch kernel=prep_kernel grid=(256,1,1) block=(256,1,1) lds=0\n"
    out += "; @launch kernel=%s_kernel grid=(256,1,1) block=(256,1,1) lds=%d\n" % (NAME, LDS_BYTES)
    out += '.amdgcn_target "amdgcn-amd-amdhsa--gfx950"\n.text\n'
    out += ".globl prep_kernel\n.p2align 8\n.type prep_kernel,@function\nprep_kernel:\n" + prep_kernel()
    out += ".globl %s_kernel\n.p2align 8\n.type %s_kernel,@function\n%s_kernel:\n" % (NAME, NAME, NAME) + body
    out += '.section .rodata,"a"\n.p2align 6\n' + kd("prep_kernel", 32, 64, 32)
    out += ".p2align 6\n" + kd(NAME + "_kernel", 512, 102, 256)
    return out, m


if __name__ == "__main__":
    cfg = Cfg()
    path = "cdna_kernels/%s.s" % NAME
    for arg in sys.argv[1:]:
        if "=" in arg:
            k, val = arg.split("=", 1)
            if k == "out":
                path = val
            else:
                setattr(cfg, k, eval(val))
    text, m = generate(cfg)
    open(path, "w").write(text)
    print("wrote", path, len(text), "bytes;", m.A.n_ins, "instructions,", m.A.n_nop, "nops; est cycles", m.A.t)
    if cfg.stamps:
        open(path + ".stamps", "w").write("\n".join(m.stamp_names))
```
